```python
import torch

def _softmax(x, axis=-1):
    return torch.softmax(x, dim=axis)
def _gelu(x):
    return torch.nn.functional.gelu(x, approximate="tanh")
def _silu(x):
    return torch.nn.functional.silu(x)
def _sigmoid(x):
    return torch.sigmoid(x)
def _layernorm(x, axis=-1, eps=1e-5):
    m = x.mean(dim=axis, keepdim=True)
    v = x.var(dim=axis, keepdim=True, unbiased=False)
    return (x - m) / torch.sqrt(v + eps)
def _scatter_add(tgt, idx, src, axis=0):
    return tgt.clone().index_add_(axis, idx, src)
def _segment_sum(src, seg, n):
    out = torch.zeros((n,) + src.shape[1:], dtype=src.dtype)
    return out.index_add_(0, seg, src)
def _pad(x, pw):
    flat = tuple(v for pair in reversed(pw) for v in pair)
    return torch.nn.functional.pad(x, flat)

kernel_name = 'standalone__mha_softmax__near_ridge'

def setup_inputs():

    _w = (lambda a: (lambda t: t.to(torch.bfloat16) if t.is_floating_point() else t)(torch.as_tensor(a)))
    B, H, Sq, Sk, D = 16, 32, 192, 1024, 128
    return {
        "q": _w((lambda *s: torch.randn(*s, dtype=torch.bfloat16) * 0.8)(B, H, Sq, D)),
        "k": _w((lambda *s: torch.randn(*s, dtype=torch.bfloat16) * 0.8)(B, H, Sk, D)),
        "v": _w((lambda *s: torch.randn(*s, dtype=torch.bfloat16) * 0.05)(B, H, Sk, D)),
    }

def reference(q, k, v):
    scale = q.shape[-1] ** -0.5
    scores = torch.einsum("bhqd,bhkd->bhqk", q, k) * scale
    p = _softmax(scores, axis=-1)
    return torch.einsum("bhqk,bhkd->bhqd", p, v)
```

```python
import re

class I:
    __slots__ = ("text", "kind", "rd", "wr", "cost", "srcc", "passes", "note")
    def __init__(self, text, kind, rd=(), wr=(), cost=1, srcc=(), passes=0, note=None):
        self.text = text
        self.kind = kind
        self.rd = tuple(rd)
        self.wr = tuple(wr)
        self.cost = cost
        self.srcc = tuple(srcc)
        self.passes = passes
        self.note = note
    def __repr__(self):
        return self.text

def regs(spec):
    spec = spec.strip()
    neg = spec.lstrip("-")
    m = re.fullmatch(r"([vas])\[(\d+):(\d+)\]", neg)
    if m:
        return [f"{m.group(1)}{i}" for i in range(int(m.group(2)), int(m.group(3)) + 1)]
    m = re.fullmatch(r"([vas])(\d+)", neg)
    if m:
        return [neg]
    if neg in ("vcc", "m0", "exec", "scc"):
        return [neg]
    return []

def rng(kind, base, n):
    return f"{kind}{base}" if n == 1 else f"{kind}[{base}:{base + n - 1}]"

def _rd(*ops):
    out = []
    for o in ops:
        out += regs(str(o))
    return out

TRANS = ("v_exp_f32", "v_rcp_f32", "v_log_f32", "v_rsq_f32", "v_sqrt_f32")

def valu(op, dst, *src, extra=""):
    kind = "trans" if op in TRANS else "valu"
    text = f"{op} {dst}, " + ", ".join(str(s) for s in src) + (" " + extra if extra else "")
    rd = _rd(*src)
    if op in ("v_fmac_f32", "v_dot2c_f32_bf16"):
        rd += regs(dst)
    return I(text, kind, rd, regs(dst), cost=2 if kind == "trans" else 1)

def vcmp(op, dst, a, b):
    return I(f"{op} {dst}, {a}, {b}", "valu", _rd(a, b), regs(dst))

def permswap(a, b):
    return I(f"v_permlane32_swap_b32 {a}, {b}", "permlane", _rd(a, b), _rd(a, b))

def readfirstlane(s, v):
    return I(f"v_readfirstlane_b32 {s}, {v}", "readlane", _rd(v), regs(s))

def mfma32(d, a, b, c):
    return I(f"v_mfma_f32_32x32x16_bf16 {d}, {a}, {b}, {c}", "mfma", _rd(a, b), regs(d), cost=2,
             srcc=_rd(c), passes=8)

def mfma16(d, a, b, c):
    return I(f"v_mfma_f32_16x16x32_bf16 {d}, {a}, {b}, {c}", "mfma", _rd(a, b), regs(d), cost=2,
             srcc=_rd(c), passes=4)

def salu(op, dst, *src):
    text = f"{op} {dst}" + "".join(f", {s}" for s in src)
    if op.startswith("s_cmp"):
        return I(text, "salu", _rd(dst, *src), ["scc"])
    rd = _rd(*src)
    if op in ("s_cselect_b32", "s_addc_u32", "s_cmov_b32"):
        rd.append("scc")
    return I(text, "salu", rd, regs(dst))

def ds_read(op, dst, addr, off=0):
    return I(f"{op} {dst}, {addr}" + (f" offset:{off}" if off else ""), "ds_read", _rd(addr), regs(dst))

def ds_write(op, addr, src, off=0):
    return I(f"{op} {addr}, {src}" + (f" offset:{off}" if off else ""), "ds_write", _rd(addr, src), [])

def dma(vaddr, srd, soff, off=0, flags=""):
    t = f"buffer_load_dwordx4 {vaddr}, {srd}, {soff} offen" + (f" offset:{off}" if off else "")
    t += (" " + flags if flags else "") + " lds"
    return I(t, "dma", _rd(vaddr, srd, soff) + ["m0"], [])

def bstore(op, data, vaddr, srd, soff, off=0, flags=""):
    t = f"{op} {data}, {vaddr}, {srd}, {soff} offen" + (f" offset:{off}" if off else "")
    t += (" " + flags if flags else "")
    return I(t, "vmem_store", _rd(data, vaddr, srd, soff), [], note=regs(data))

def bload(op, data, vaddr, srd, soff, off=0, flags=""):
    t = f"{op} {data}, {vaddr}, {srd}, {soff} offen" + (f" offset:{off}" if off else "")
    t += (" " + flags if flags else "")
    return I(t, "vmem_load", _rd(vaddr, srd, soff), regs(data))

def wait(vm=None, lgkm=None):
    parts = []
    if vm is not None:
        parts.append(f"vmcnt({vm})")
    if lgkm is not None:
        parts.append(f"lgkmcnt({lgkm})")
    return I("s_waitcnt " + " ".join(parts), "wait", note=(vm, lgkm))

def nop(n):
    return I(f"s_nop {n}", "nop", note=n + 1)

def barrier():
    return I("s_barrier", "barrier")

def label(name):
    return I(f"{name}:", "label", cost=0)

def branch(op, target):
    rd = []
    if "vcc" in op:
        rd = ["vcc"]
    if "scc" in op:
        rd = ["scc"]
    return I(f"{op} {target}", "branch", rd, [])

def raw(text, kind="salu", rd=(), wr=()):
    return I(text, kind, rd, wr)

def comment(text):
    return I(f"; {text}", "label", cost=0)

VALU_KINDS = ("valu", "trans", "permlane", "readlane")

def check(seq, name=""):
    errs = []
    pos = 0
    last_valu_w = {}
    last_trans_w = {}
    last_mfma_w = {}
    last_mfma_c = {}
    last_salu_w = {}
    last_store = {}
    lds_q = []
    vm_q = []
    def need(cond, msg, ins):
        if not cond:
            errs.append(f"[{name}] {msg}: {ins.text}")
    for ins in seq:
        k = ins.kind
        if k == "label":
            continue
        touched = set(ins.rd) | set(ins.wr) | set(ins.srcc)
        for ent in lds_q:
            if ent & touched:
                need(False, f"LDS result not waited ({sorted(ent & touched)[:2]})", ins)
        for ent in vm_q:
            if ent & touched:
                need(False, f"VMEM result not waited ({sorted(ent & touched)[:2]})", ins)
        if k == "mfma":
            for r in list(ins.rd) + list(ins.srcc):
                if r in last_valu_w:
                    need(pos - last_valu_w[r] - 1 >= 2, f"VALU->MFMA {r}", ins)
            for r in ins.rd:
                if r in last_mfma_w:
                    p, ps, _ = last_mfma_w[r]
                    need(pos - p - 1 >= (12 if ps == 8 else 8), f"MFMA D->MFMA A/B {r}", ins)
            for r in ins.srcc:
                if r in last_mfma_w:
                    p, ps, d = last_mfma_w[r]
                    if not (d == ins.srcc and ps == ins.passes):
                        need(pos - p - 1 >= (10 if ps == 8 else 6), f"MFMA D->MFMA C overlap {r}", ins)
        if k in VALU_KINDS or k in ("ds_read", "ds_write", "vmem_load", "vmem_store", "dma"):
            for r in list(ins.rd) + list(ins.wr):
                if r in last_mfma_w:
                    p, ps, _ = last_mfma_w[r]
                    need(pos - p - 1 >= (12 if ps == 8 else 8), f"MFMA D->VALU/mem {r}", ins)
        if k in VALU_KINDS:
            for r in ins.wr:
                if r in last_mfma_c:
                    p, ps = last_mfma_c[r]
                    need(pos - p - 1 >= (7 if ps == 8 else 3), f"MFMA C WAR {r}", ins)
                if r in last_store:
                    need(pos - last_store[r] - 1 >= 2, f"store data WAR {r}", ins)
            if k != "trans":
                for r in ins.rd:
                    if r in last_trans_w:
                        need(pos - last_trans_w[r] - 1 >= 1, f"trans->VALU {r}", ins)
            for r in ins.rd:
                if (r.startswith("s") or r == "vcc") and r in last_valu_w:
                    need(pos - last_valu_w[r] - 1 >= 2, f"VALU sgpr->VALU const {r}", ins)
        if k == "permlane":
            for r in ins.rd:
                if r in last_valu_w:
                    need(pos - last_valu_w[r] - 1 >= 2, f"VALU->permlane {r}", ins)
        if k == "readlane":
            for r in ins.rd:
                if r in last_valu_w:
                    need(pos - last_valu_w[r] - 1 >= 1, f"VALU->readlane {r}", ins)
        if k in ("vmem_load", "vmem_store", "dma"):
            for r in ins.rd:
                if r.startswith("s") and r in last_valu_w:
                    need(pos - last_valu_w[r] - 1 >= 5, f"VALU sgpr->VMEM {r}", ins)
        if k == "dma":
            if "m0" in last_salu_w:
                need(pos - last_salu_w["m0"] - 1 >= 1, "M0->DMA", ins)
        if k in ("ds_read", "vmem_load"):
            for r in ins.wr:
                if r in last_store:
                    need(pos - last_store[r] - 1 >= 1, f"store data WAR(load) {r}", ins)
        if k in VALU_KINDS:
            for r in ins.wr:
                last_valu_w[r] = pos
                last_trans_w.pop(r, None)
                last_mfma_w.pop(r, None)
                if k == "trans":
                    last_trans_w[r] = pos
        if k == "salu":
            for r in ins.wr:
                last_salu_w[r] = pos
                last_valu_w.pop(r, None)
        if k == "mfma":
            for r in ins.wr:
                last_mfma_w[r] = (pos, ins.passes, ins.wr)
                last_valu_w.pop(r, None)
            for r in ins.srcc:
                last_mfma_c[r] = (pos, ins.passes)
        if k == "ds_read":
            lds_q.append(set(ins.wr))
            for r in ins.wr:
                last_valu_w.pop(r, None)
        if k == "ds_write":
            lds_q.append(set())
        if k in ("vmem_load",):
            vm_q.append(set(ins.wr))
        if k in ("vmem_store", "dma"):
            vm_q.append(set())
        if k == "vmem_store" and len(ins.note) > 2:
            for r in ins.note:
                last_store[r] = pos
        if k == "wait":
            vm, lg = ins.note
            if lg is not None:
                while len(lds_q) > lg:
                    lds_q.pop(0)
            if vm is not None:
                while len(vm_q) > vm:
                    vm_q.pop(0)
        pos += ins.note if k == "nop" else 1
    return errs

def render(seq):
    out = []
    for ins in seq:
        out.append(ins.text if ins.kind == "label" and not ins.text.startswith(";") else "    " + ins.text)
    return "\n".join(out)
```

```python
import sys, math, struct, argparse
from asmlib import *

NAME = "standalone__mha_softmax__near_ridge"

def f32bits(x):
    return struct.unpack("<I", struct.pack("<f", x))[0]

class Cfg:
    NS = 5
    HPW = 2
    KVF = "nt"
    QF = "nt"
    OF = ""
    T = 8.0
    ROT = 0
    OFF = 2
    NOCOMP = 0
    NOSTORE = 0
    STAMP = 0
    FORCE = 0

sKARG = "s[0:1]"; sWG = "s2"
sQP, sKP, sVP, sOP = 4, 6, 8, 10
SRD_Q, SRD_K, SRD_V, SRD_O = 12, 16, 20, 24
sW, sHEAD, sHB, sN, sOFF, sDMA, sINC, sDMA0, sDMAEND, sDMALAST, sT, sC, s8K, s16K, sTMP, sTMP2, sNEG = \
    [f"s{i}" for i in range(28, 45)]
sWS = 46
sST = 48
def srd(b): return f"s[{b}:{b+3}]"

V_S = 0
V_NEGM = 48
V_KA = 96
V_VA = 104
V_KD = 108
V_VD = 112
V_L = 113
V_MX = 116
V_T0 = 117
V_F = 118
V_OA = 119
V_TMP = 120
V_Q = 160
A_O = 0; A_K = 192; A_V = 224

def S(b, i): return f"v{V_S + 16 * b + i}"
def Sblk(b): return rng("v", V_S + 16 * b, 16)
def P(b, t): return rng("v", V_S + 16 * b + 8 * t, 4)
def Pd(b, j): return f"v{V_S + 16 * b + (j if j < 4 else 8 + j - 4)}"
def NEGM(b, i): return f"v{V_NEGM + 16 * b + i}"
def NEGMblk(b): return rng("v", V_NEGM + 16 * b, 16)
def Q(b, ks): return rng("v", V_Q + 32 * b + 4 * ks, 4)
def O(b, db): return rng("a", A_O + 64 * b + 16 * db, 16)
def KF(ks): return rng("a", A_K + 4 * ks, 4)
def VF(t, db): return rng("a", A_V + 16 * t + 4 * db, 4)
def VFh(t, db, u): return rng("a", A_V + 16 * t + 4 * db + 2 * u, 2)
def L(b): return f"v{V_L + b}"
MX, T0, FF = f"v{V_MX}", f"v{V_T0}", f"v{V_F}"

BREAK = "BREAK"

def qk_group(b, first):
    out = []
    for ks in range(8):
        c = Sblk(b) if ks else ("0" if first else NEGMblk(b))
        out.append(mfma32(Sblk(b), KF(ks), Q(b, ks), c))
    return out

def pv_group(b):
    return [mfma32(O(b, db), VF(t, db), P(b, t), O(b, db)) for t in range(2) for db in range(4)]

def max_chain(b):
    ops = [valu("v_max3_f32", MX, S(b, 0), S(b, 1), S(b, 2))]
    for i in range(3, 15, 2):
        ops.append(valu("v_max3_f32", MX, MX, S(b, i), S(b, i + 1)))
    ops.append(valu("v_max_f32", MX, MX, S(b, 15)))
    return ops

def exp_part(b, sub):
    ops = []
    if sub:
        ops.append(valu("v_sub_f32", S(b, 0), S(b, 0), MX))
    for i in range(16):
        if sub and i < 15:
            ops.append(valu("v_sub_f32", S(b, i + 1), S(b, i + 1), MX))
        ops.append(valu("v_exp_f32", S(b, i), S(b, i)))
        if i >= 1:
            ops.append(valu("v_add_f32", L(b), L(b), S(b, i - 1)))
        if i >= 2 and i % 2 == 0:
            j = (i - 2) // 2
            ops.append(valu("v_cvt_pk_bf16_f32", Pd(b, j), S(b, 2 * j), S(b, 2 * j + 1)))
    ops.append(valu("v_add_f32", L(b), L(b), S(b, 15)))
    ops.append(valu("v_cvt_pk_bf16_f32", Pd(b, 7), S(b, 14), S(b, 15)))
    return ops

class Gen:
    def __init__(self, cfg):
        self.c = cfg
        self.rare = []
        self.nrare = 0

    def sm_ops(self, b, init):
        ops = max_chain(b)
        if init:
            ops += [valu("v_mov_b32", T0, MX), nop(1), permswap(MX, T0), valu("v_max_f32", MX, MX, T0)]
            ops += [valu("v_sub_f32", NEGM(b, i), 0, MX) for i in range(16)]
            ops += exp_part(b, True)
        else:
            k = self.nrare
            self.nrare += 1
            self.rare.append((f"L_rare{k}", f"L_back{k}", b))
            ops += [vcmp("v_cmp_lt_f32", "vcc", sT, MX), BREAK,
                    branch("s_cbranch_vccnz", f"L_rare{k}"), label(f"L_back{k}")]
            ops += exp_part(b, False)
        return ops

    def rare_block(self, lab, back, b):
        out = [label(lab), valu("v_mov_b32", T0, MX), nop(1), permswap(MX, T0),
               valu("v_max3_f32", MX, MX, T0, 0), valu("v_exp_f32", FF, "-" + MX)]
        out += [valu("v_sub_f32", S(b, i), S(b, i), MX) for i in range(16)]
        out += [valu("v_sub_f32", NEGM(b, i), NEGM(b, i), MX) for i in range(16)]
        out.append(valu("v_mul_f32", L(b), L(b), FF))
        for r0 in range(0, 64, 8):
            for j in range(8):
                out.append(valu("v_accvgpr_read_b32", f"v{V_TMP + j}", f"a{A_O + 64 * b + r0 + j}"))
            for j in range(8):
                out.append(valu("v_mul_f32", f"v{V_TMP + j}", f"v{V_TMP + j}", FF))
            for j in range(8):
                out.append(valu("v_accvgpr_write_b32", f"a{A_O + 64 * b + r0 + j}", f"v{V_TMP + j}"))
        out.append(branch("s_branch", back))
        return out

    @staticmethod
    def pour(ops, gaps, caps):
        total = sum(o.cost for o in ops if o is not BREAK)
        capsum = sum(caps[g] for g in gaps)
        res = {g: [] for g in gaps}
        idx = 0
        done = 0.0
        cum = 0.0
        for gi, g in enumerate(gaps):
            cum += caps[g]
            target = total * cum / capsum
            last = gi == len(gaps) - 1
            while idx < len(ops):
                o = ops[idx]
                if o is BREAK:
                    idx += 1
                    if not last:
                        break
                    continue
                if o.kind == "label":
                    res[g].append(o); idx += 1
                    continue
                if not last and done + o.cost / 2.0 > target:
                    break
                res[g].append(o)
                done += o.cost
                idx += 1
        return res

    def dma_tile(self):
        c = self.c
        k = [dma(f"v{V_KD + j}", srd(SRD_K), sOFF, 1024 * j, c.KVF) for j in range(4)]
        v = [dma(f"v{V_VD}", srd(SRD_V), sOFF, 1024 * j, c.KVF) for j in range(4)]
        return k, v

    def advance_dma(self):
        c = self.c
        return [salu("s_add_u32", sDMA, sDMA, 16384),
                salu("s_cmp_eq_u32", sDMA, sDMAEND),
                salu("s_cselect_b32", sDMA, sDMA0, sDMA),
                salu("s_add_u32", sOFF, sOFF, 8192),
                salu("s_and_b32", sOFF, sOFF, "0x3ffff")]

    def issue_tile_now(self):
        k, v = self.dma_tile()
        out = [salu("s_mov_b32", "m0", sDMA), nop(0)] + k
        out += [salu("s_add_u32", "m0", sDMA, 8192), nop(0)] + v
        out += self.advance_dma()
        return out

    def k_reads(self):
        return [ds_read("ds_read_b128", KF(ks), f"v{V_KA + ks}") for ks in range(8)]

    def v_reads(self):
        out = []
        for t in range(2):
            for db in range(4):
                out.append([ds_read("ds_read_b64_tr_b16", VFh(t, db, u), f"v{V_VA + db}", 8192 + 4096 * t + 2048 * u)
                            for u in range(2)])
        return out

    def fixed_fillers(self, last):
        c = self.c
        fx = {g: [] for g in range(48)}
        pre = {g: [] for g in range(48)}
        if last:
            return fx, pre
        pre[0] += [wait(vm=8 * (c.NS - 2)), barrier()]
        kr = self.k_reads()
        for ks in range(8):
            fx[ks].append(kr[ks])
        kd, vd = self.dma_tile()
        fx[8] += [salu("s_cmp_ge_u32", sN, 32 - c.NS),
                  salu("s_cselect_b32", f"s{SRD_K + 2}", 0, "0x40000"),
                  salu("s_mov_b32", "m0", sDMA)]
        fx[9] += [salu("s_mov_b32", f"s{SRD_V + 2}", f"s{SRD_K + 2}"), kd[0]]
        fx[11].append(kd[1]); fx[13].append(kd[2]); fx[15].append(kd[3])
        pre[16].append(wait(lgkm=0))
        fx[16].append(salu("s_add_u32", "m0", sDMA, 8192))
        adv = self.advance_dma()
        fx[17] += adv[0:1]
        fx[18] += adv[1:3]
        fx[19] += [salu("s_cmp_eq_u32", sDMA, sDMALAST), salu("s_cselect_b32", sINC, sNEG, 16384)]
        for ks in range(8):
            fx[20 + ks // 2].append(valu("v_add_u32", f"v{V_KA + ks}", sINC, f"v{V_KA + ks}"))
        vr = self.v_reads()
        for f in range(8):
            fx[24 + f] += vr[f]
        fx[33].append(vd[0]); fx[35].append(vd[1]); fx[37].append(vd[2]); fx[39].append(vd[3])
        pre[40].append(wait(lgkm=0))
        fx[40] += adv[3:5]
        for db in range(4):
            fx[41 + db].append(valu("v_add_u32", f"v{V_VA + db}", sINC, f"v{V_VA + db}"))
        fx[46].append(salu("s_add_u32", sN, sN, 1))
        return fx, pre

    def caps_of(self, fx, pre):
        caps = {}
        for g in range(48):
            used = sum(o.cost for o in fx[g]) + sum(o.cost for o in pre[(g + 1) % 48])
            caps[g] = max(0.5, 6.0 - used)
        return caps

    def body(self, carry_in, init, last):
        c = self.c
        off = c.OFF
        fx, pre = self.fixed_fillers(last)
        caps = self.caps_of(fx, pre)
        mf = qk_group(2, init) + pv_group(1)
        if last:
            mf += [None] * 8 + pv_group(2) + [None] * 16
        else:
            mf += qk_group(0, False) + pv_group(2) + qk_group(1, False) + pv_group(0)
        sm = {g: [] for g in range(48)}
        def add(res):
            for g, l in res.items():
                sm[g] += l
        add(self.pour(carry_in, list(range(0, 8 + off)), caps))
        tail = None
        if last:
            g2 = list(range(8 + off, 16)) + list(range(24, 24 + off))
            add(self.pour(self.sm_ops(2, init), g2, caps))
        else:
            add(self.pour(self.sm_ops(2, init), list(range(8 + off, 24 + off)), caps))
            add(self.pour(self.sm_ops(0, False), list(range(24 + off, 40 + off)), caps))
            ops1 = self.sm_ops(1, False)
            gl = list(range(40 + off, 48)) + list(range(0, 8 + off))
            res = self.pour(ops1, gl, caps)
            tail = []
            for g in gl:
                if g >= 40:
                    sm[g] += res[g]
                else:
                    tail += res[g]
        out = []
        for g in range(48):
            if mf[g] is None:
                assert not sm[g] and not fx[g], g
                continue
            out += pre[g]
            if not c.NOCOMP:
                out.append(mf[g])
            brs = []
            rest = list(sm[g])
            while rest and rest[0].kind in ("branch", "label"):
                brs.append(rest.pop(0))
            if c.NOCOMP:
                out += fx[g]
            else:
                out += brs + fx[g] + rest
        return out, tail

    def prologue(self):
        c = self.c
        NS = c.NS
        nwg = 512 // c.HPW
        o = []
        o += [salu("s_cmp_ge_u32", sWG, nwg), branch("s_cbranch_scc1", "L_end")]
        o.append(raw("s_load_dwordx8 s[4:11], s[0:1], 0", "salu", wr=regs("s[4:11]")))
        if c.STAMP:
            o.append(raw(f"s_load_dwordx2 s[{sWS}:{sWS+1}], s[0:1], 40", "salu"))
            o.append(raw(f"s_memrealtime s[{sST}:{sST+1}]", "salu"))
        t = [f"v{V_TMP + i}" for i in range(16)]
        lane, r, h, i16, rr = t[0], t[1], t[2], t[3], t[4]
        o += [valu("v_lshrrev_b32", t[5], 6, "v0"), valu("v_and_b32", lane, 63, "v0"),
              readfirstlane(sTMP, t[5]),
              valu("v_and_b32", r, 31, lane), valu("v_lshrrev_b32", h, 5, lane),
              valu("v_and_b32", i16, 15, lane), valu("v_lshrrev_b32", rr, 4, lane)]
        o += [salu("s_and_b32", sW, sTMP, 1)]
        if c.HPW == 2:
            o += [salu("s_lshr_b32", sTMP, sTMP, 1),
                  salu("s_lshl_b32", sHEAD, sWG, 1), salu("s_add_u32", sHEAD, sHEAD, sTMP),
                  salu("s_mul_i32", sHB, sTMP, NS * 16384)]
        else:
            o += [salu("s_mov_b32", sHEAD, sWG), salu("s_mov_b32", sHB, 0)]
        o += [valu("v_xor_b32", t[5], i16, rr), valu("v_lshlrev_b32", t[6], 8, rr),
              valu("v_lshl_add_u32", f"v{V_KD}", t[5], 4, t[6])]
        for j in range(1, 4):
            o.append(valu("v_xor_b32", f"v{V_KD + j}", 64 * j, f"v{V_KD}"))
        o += [valu("v_lshlrev_b32", t[5], 2, rr), valu("v_xor_b32", t[5], i16, t[5]),
              valu("v_lshl_add_u32", f"v{V_VD}", t[5], 4, t[6])]
        o += [salu("s_lshl_b32", sTMP, sW, 12), salu("s_add_u32", sDMA0, sHB, sTMP),
              salu("s_add_u32", sDMAEND, sDMA0, NS * 16384),
              salu("s_add_u32", sDMALAST, sDMA0, (NS - 1) * 16384),
              salu("s_mov_b32", sDMA, sDMA0),
              salu("s_mov_b32", sNEG, -(NS - 1) * 16384),
              salu("s_mov_b32", sT, hex(f32bits(-1e30 if c.FORCE else c.T))),
              salu("s_mov_b32", sC, hex(f32bits(math.log2(math.e) / math.sqrt(128.0)))),
              salu("s_mov_b32", s8K, 8192), salu("s_mov_b32", s16K, 16384)]
        if c.ROT:
            o += [salu("s_mul_i32", sOFF, sHEAD, c.ROT), salu("s_and_b32", sOFF, sOFF, 31),
                  salu("s_lshl_b32", sOFF, sOFF, 13), salu("s_add_u32", sOFF, sOFF, sTMP)]
        else:
            o += [salu("s_mov_b32", sOFF, sTMP)]
        o.append(wait(lgkm=0))
        for (base, ptr, nbytes) in ((SRD_Q, sQP, 49152), (SRD_K, sKP, 262144), (SRD_V, sVP, 262144), (SRD_O, sOP, 49152)):
            o += [salu("s_mul_i32", sTMP, sHEAD, nbytes),
                  salu("s_add_u32", f"s{base}", f"s{ptr}", sTMP),
                  salu("s_addc_u32", f"s{base+1}", f"s{ptr+1}", 0),
                  salu("s_and_b32", f"s{base+1}", f"s{base+1}", "0xffff"),
                  salu("s_mov_b32", f"s{base+2}", nbytes),
                  salu("s_mov_b32", f"s{base+3}", "0x20000")]
        qlds = (NS - 3) * 16384
        o += [salu("s_mul_i32", sTMP, sW, 24576), salu("s_add_u32", sTMP2, sTMP, sHB),
              salu("s_add_u32", sTMP2, sTMP2, qlds)]
        for g in range(6):
            o += [salu("s_mov_b32", "m0", sTMP2), nop(0)]
            o += [dma(f"v{V_KD + j}", srd(SRD_Q), sTMP, 1024 * j, c.QF) for j in range(4)]
            if g < 5:
                o += [salu("s_add_u32", sTMP, sTMP, 4096), salu("s_add_u32", sTMP2, sTMP2, 4096)]
        for _ in range(NS - 3):
            o += self.issue_tile_now()
        o += [valu("v_and_b32", t[5], 15, r), valu("v_xor_b32", t[5], t[5], h),
              valu("v_lshlrev_b32", t[6], 8, r), valu("v_lshl_add_u32", t[5], t[5], 4, t[6]),
              valu("v_add_u32", f"v{V_KA}", sHB, t[5])]
        for ks in range(1, 8):
            o += [valu("v_xor_b32", t[6], 32 * ks, t[5]), valu("v_add_u32", f"v{V_KA + ks}", sHB, t[6])]
        o += [valu("v_lshrrev_b32", t[5], 2, i16),
              valu("v_lshl_add_u32", t[6], h, 2, t[5]), valu("v_lshlrev_b32", t[6], 8, t[6]),
              valu("v_lshl_add_u32", t[6], t[5], 6, t[6]),
              valu("v_and_b32", t[7], 1, rr), valu("v_lshl_add_u32", t[6], t[7], 5, t[6]),
              valu("v_and_b32", t[7], 3, i16), valu("v_lshl_add_u32", t[6], t[7], 3, t[6]),
              valu("v_add_u32", f"v{V_VA}", sHB, t[6])]
        for db in range(1, 4):
            o += [valu("v_xor_b32", t[7], 64 * db, t[6]), valu("v_add_u32", f"v{V_VA + db}", sHB, t[7])]
        o += [salu("s_mul_i32", sTMP, sW, 24576), valu("v_lshlrev_b32", t[5], 8, r),
              valu("v_lshl_add_u32", t[5], h, 4, t[5]), valu("v_add_u32", f"v{V_OA}", sTMP, t[5])]
        for ks in range(8):
            o.append(valu("v_add_u32", t[8 + ks], sTMP, f"v{V_KA + ks}"))
        for a in range(192):
            o.append(valu("v_accvgpr_write_b32", f"a{A_O + a}", 0))
        for b in range(3):
            o.append(valu("v_mov_b32", L(b), 0))
        o.append(wait(vm=8 * (NS - 3)))
        for b in range(3):
            for ks in range(8):
                o.append(ds_read("ds_read_b128", Q(b, ks), t[8 + ks], qlds + 8192 * b))
            o.append(wait(lgkm=0))
        o.append(barrier())
        for _ in range(3):
            o += self.issue_tile_now()
        for k0 in range(0, 96, 4):
            for k in range(4):
                q = f"v{V_Q + k0 + k}"
                o += [valu("v_lshlrev_b32", t[2 * k], 16, q), valu("v_and_b32", t[2 * k + 1], "0xffff0000", q)]
            for k in range(8):
                o.append(valu("v_mul_f32", t[k], sC, t[k]))
            for k in range(4):
                o.append(valu("v_cvt_pk_bf16_f32", f"v{V_Q + k0 + k}", t[2 * k], t[2 * k + 1]))
        o += [wait(vm=8 * (NS - 1)), barrier()]
        o += self.k_reads()
        o.append(wait(lgkm=0))
        for l in self.v_reads():
            o += l
        for ks in range(8):
            o.append(valu("v_add_u32", f"v{V_KA + ks}", s16K, f"v{V_KA + ks}"))
        for db in range(4):
            o.append(valu("v_add_u32", f"v{V_VA + db}", s16K, f"v{V_VA + db}"))
        o.append(salu("s_mov_b32", sN, 0))
        tail = []
        g0, g2, g3 = qk_group(0, True), qk_group(1, True), pv_group(0)
        caps = {g: 1.0 for g in range(64)}
        r0 = self.pour(self.sm_ops(0, True), list(range(2, 8)), caps)
        ops1 = self.sm_ops(1, True)
        gl = list(range(2, 18))
        r1 = self.pour(ops1, gl, caps)
        if not c.NOCOMP:
            o += g0
            o.append(nop(9))
            for g in range(8):
                o.append(g2[g])
                o += r0.get(g, [])
            o += [wait(lgkm=0), nop(0)]
            o += [g3[0], nop(3), g3[1], nop(3)]
            for g in range(2, 8):
                o.append(g3[g])
                o += r1[g]
        else:
            o.append(wait(lgkm=0))
        for g in range(8, 18):
            tail += r1[g]
        return o, tail

    def epilogue(self):
        c = self.c
        o = [nop(7), nop(3)]
        t = [f"v{V_TMP + i}" for i in range(16)]
        for b in range(3):
            o += [valu("v_mov_b32", T0, L(b)), nop(1), permswap(L(b), T0),
                  valu("v_add_f32", L(b), L(b), T0), valu("v_rcp_f32", L(b), L(b))]
        k = 0
        for b in range(3):
            soff = ("0", s8K, s16K)[b]
            for db in range(4):
                for a in range(2):
                    base = A_O + 64 * b + 16 * db + 8 * a
                    pk = [f"v{V_S + 4 * (k % 8) + j}" for j in range(4)]
                    k += 1
                    for j in range(8):
                        o.append(valu("v_accvgpr_read_b32", t[j], f"a{base + j}"))
                    for j in range(8):
                        o.append(valu("v_mul_f32", t[j], t[j], L(b)))
                    for j in range(4):
                        o.append(valu("v_cvt_pk_bf16_f32", pk[j], t[2 * j], t[2 * j + 1]))
                    o += [nop(1), permswap(pk[0], pk[2]), permswap(pk[1], pk[3])]
                    if not c.NOSTORE:
                        o.append(bstore("buffer_store_dwordx4", rng("v", int(pk[0][1:]), 4), f"v{V_OA}",
                                        srd(SRD_O), soff, 64 * db + 32 * a, c.OF))
        if c.STAMP:
            o += [wait(vm=0), raw(f"s_memrealtime s[{sST+2}:{sST+3}]", "salu"),
                  salu("s_lshl_b32", sTMP, sHEAD, 1), salu("s_add_u32", sTMP, sTMP, sW),
                  salu("s_lshl_b32", sTMP, sTMP, 4),
                  salu("s_add_u32", f"s{sWS}", f"s{sWS}", sTMP), salu("s_addc_u32", f"s{sWS+1}", f"s{sWS+1}", 0),
                  wait(lgkm=0)]
            for j in range(4):
                o.append(valu("v_mov_b32", t[j], f"s{sST + j}"))
            o += [valu("v_mov_b32", t[4], 0),
                  raw(f"global_store_dwordx4 {t[4]}, v[{V_TMP}:{V_TMP+3}], s[{sWS}:{sWS+1}]", "vmem_store")]
            o[-1].note = []
        return o

    def build(self):
        c = self.c
        pro, tail0 = self.prologue()
        b0, tail1 = self.body(tail0, True, False)
        bl, tail2 = self.body(tail1, False, False)
        assert [x.text for x in tail1 if x.kind not in ("label", "branch")] == \
               [x.text for x in tail2 if x.kind not in ("label", "branch")]
        assert not any(x.kind in ("label", "branch") for x in tail1), "softmax branch must sit in the head part"
        bf, _ = self.body(tail2, False, True)
        epi = self.epilogue()
        loop_end = [salu("s_cmp_lt_u32", sN, 31), branch("s_cbranch_scc1", "L_loop")]
        errs = check(pro + b0 + bl + loop_end + bl + loop_end + bf + epi, "main")
        rare = []
        for lab, back, b in self.rare:
            blk = self.rare_block(lab, back, b)
            errs += check(blk, lab)
            if not c.NOCOMP:
                rare += blk
        for e in errs:
            print("HAZARD", e, file=sys.stderr)
        seq = pro + [comment("first body")] + b0 + [raw(".p2align 6", "label"), label("L_loop")] + bl + loop_end
        seq += [comment("last body")] + bf + epi + [label("L_end"), raw("s_endpgm")] + rare
        lds = c.NS * 16384 * c.HPW
        head = open("cdna_kernels/" + NAME + ".s.ref").read().split("; Override launch")[0]
        txt = head
        txt += f"; @launch grid=({512 // c.HPW},1,1) block=({128 * c.HPW},1,1) lds={lds}\n"
        txt += '.amdgcn_target "amdgcn-amd-amdhsa--gfx950"\n.text\n'
        txt += f".globl {NAME}_kernel\n.p2align 8\n.type {NAME}_kernel,@function\n{NAME}_kernel:\n"
        txt += render(seq) + "\n"
        txt += f""".section .rodata,"a"
.p2align 6
.amdhsa_kernel {NAME}_kernel
  .amdhsa_next_free_vgpr 512
  .amdhsa_next_free_sgpr 64
  .amdhsa_accum_offset 256
  .amdhsa_group_segment_fixed_size 0
  .amdhsa_kernarg_size 48
  .amdhsa_user_sgpr_count 2
  .amdhsa_user_sgpr_kernarg_segment_ptr 1
  .amdhsa_system_sgpr_workgroup_id_x 1
.end_amdhsa_kernel
"""
        return txt, len(errs), bl

if __name__ == "__main__":
    ap = argparse.ArgumentParser()
    ap.add_argument("-o", default="cdna_kernels/" + NAME + ".s")
    ap.add_argument("opts", nargs="*")
    a = ap.parse_args()
    cfg = Cfg()
    for kv in a.opts:
        k, v = kv.split("=", 1)
        cur = getattr(Cfg, k)
        setattr(cfg, k, type(cur)(v))
    txt, nerr, bl = Gen(cfg).build()
    open(a.o, "w").write(txt)
    print(f"wrote {a.o}: {len(txt)} bytes, hazards={nerr}, loop instrs={sum(1 for x in bl if x.kind != 'label')}")
```
